```python
import torch

def _softmax(x, axis=-1):
    return torch.softmax(x, dim=axis)

def _gelu(x):
    return torch.nn.functional.gelu(x, approximate='tanh')

def _silu(x):
    return torch.nn.functional.silu(x)

def _sigmoid(x):
    return torch.sigmoid(x)

def _layernorm(x, axis=-1, eps=1e-05):
    m = x.mean(dim=axis, keepdim=True)
    v = x.var(dim=axis, keepdim=True, unbiased=False)
    return (x - m) / torch.sqrt(v + eps)

def _scatter_add(tgt, idx, src, axis=0):
    return tgt.clone().index_add_(axis, idx, src)

def _segment_sum(src, seg, n):
    out = torch.zeros((n,) + src.shape[1:], dtype=src.dtype)
    return out.index_add_(0, seg, src)

def _pad(x, pw):
    flat = tuple((v for pair in reversed(pw) for v in pair))
    return torch.nn.functional.pad(x, flat)
kernel_name = 'parallel_sum__sliding_local_dilated__mixer_gmlp__prompt'

def setup_inputs():

    _w = lambda a: (lambda t: t.to(torch.bfloat16) if t.is_floating_point() else t)(torch.as_tensor(a))

    def _A_setup():
        B, S, D = (1, 2048, 1024)
        return {'x': _w((lambda *s: torch.randn(*s, dtype=torch.bfloat16) * 0.05)(B, S, D)), 'wqkv': _w((lambda *s: torch.randn(*s, dtype=torch.bfloat16) * 0.2)(D, 3 * D)), 'wo': _w((lambda *s: torch.randn(*s, dtype=torch.bfloat16) * 0.1)(D, D))}
    _A_in = _A_setup()

    def _B_setup():
        B, S, D, F = (1, 2048, 1024, 3584)
        Fh = F // 2
        return {'x': _w((lambda *s: torch.randn(*s, dtype=torch.bfloat16) * 0.05)(B, S, D)), 'w_in': _w((lambda *s: torch.randn(*s, dtype=torch.bfloat16) * 1.6)(D, 2 * Fh)), 'w_sp': _w(0.01 * (lambda *s: torch.randn(*s, dtype=torch.bfloat16) * 1.6)(S, S)), 'b_sp': _w(1.0 + 0.01 * (lambda *s: torch.randn(*s, dtype=torch.bfloat16) * 0.05)(S)), 'w_out': _w((lambda *s: torch.randn(*s, dtype=torch.bfloat16) * 0.05)(Fh, D))}
    _B_in = _B_setup()
    return {'A_x': _A_in['x'], 'A_wqkv': _A_in['wqkv'], 'A_wo': _A_in['wo'], 'B_x': _B_in['x'], 'B_w_in': _B_in['w_in'], 'B_w_sp': _B_in['w_sp'], 'B_b_sp': _B_in['b_sp'], 'B_w_out': _B_in['w_out']}

def reference(A_x, A_wqkv, A_wo, B_x, B_w_in, B_w_sp, B_b_sp, B_w_out):

    def _A_ref(x, wqkv, wo):
        B, S, D = x.shape
        H = 32
        Dh = D // H
        W, dil = (8, 2)
        qkv = (lambda x, *d: x.permute(*d))((x @ wqkv).reshape(B, S, 3, H, Dh), 2, 0, 3, 1, 4)
        q, k, v = (qkv[0], qkv[1], qkv[2])
        scale = Dh ** (-0.5)
        pos = torch.arange(S)
        off = torch.arange(W) * dil
        idx = pos[:, None] - off[None, :]
        mask = idx >= 0
        idx_c = torch.where(mask, idx, 0).reshape(-1)
        kg = k[:, :, idx_c, :].reshape(B, H, S, W, Dh)
        vg = v[:, :, idx_c, :].reshape(B, H, S, W, Dh)
        logits = torch.einsum('bhsd,bhswd->bhsw', q, kg) * scale
        logits = torch.where(mask[None, None, :, :], logits, -1000000000.0)
        attn = _softmax(logits, axis=-1)
        o = torch.einsum('bhsw,bhswd->bhsd', attn, vg)
        return (lambda x, *d: x.permute(*d))(o, 0, 2, 1, 3).reshape(B, S, D) @ wo

    def _B_ref(x, w_in, w_sp, b_sp, w_out):
        B, S, D = x.shape
        F = w_in.shape[-1]
        Fh = F // 2
        z = _gelu(torch.einsum('bsd,df->bsf', x, w_in))
        z1 = z[..., :Fh].clone()
        z2 = _layernorm(z[..., Fh:], axis=-1)
        g = torch.einsum('ts,bsf->btf', w_sp, z2) + b_sp[None, :, None]
        return torch.einsum('bsf,fd->bsd', z1 * g, w_out)
    x = A_x
    xn = _layernorm(x, axis=-1)
    return x + _A_ref(xn, A_wqkv, A_wo) + _B_ref(xn, B_w_in, B_w_sp, B_b_sp, B_w_out)
```

```python
import re

class Asm:
    def __init__(self):
        self.L = []
    def __call__(self, *xs):
        for x in xs:
            if isinstance(x, (list, tuple)):
                self(*x)
            elif x:
                for y in x.split('\n'):
                    y = y.strip()
                    if y: self.L.append(y)
    def text(self):
        return '\n'.join(self.L)

def rr(p, b, n=1):
    return f'{p}{b}' if n == 1 else f'{p}[{b}:{b+n-1}]'
def V(b, n=1): return rr('v', b, n)
def AG(b, n=1): return rr('a', b, n)
def S(b, n=1): return rr('s', b, n)

_reg = re.compile(r'^-?\|?(?:abs\()?([vas])(?:(\d+)|\[(\d+):(\d+)\])\)?\|?$')
def regs_of(op):
    op = op.strip()
    if op in ('vcc', 'exec'): return {(op, 0), (op, 1)}
    if op in ('vcc_lo', 'exec_lo'): return {(op[:-3], 0)}
    if op in ('vcc_hi', 'exec_hi'): return {(op[:-3], 1)}
    if op == 'm0': return {('m0', 0)}
    m = _reg.match(op)
    if not m: return set()
    if m.group(2) is not None: return {(m.group(1), int(m.group(2)))}
    return {(m.group(1), i) for i in range(int(m.group(3)), int(m.group(4)) + 1)}

TRANS = ('v_exp_f32', 'v_log_f32', 'v_rcp_f32', 'v_rsq_f32', 'v_sqrt_f32', 'v_sin_f32', 'v_cos_f32', 'v_rcp_iflag_f32')

class Ins:
    def __init__(self, s):
        self.s = s
        t = s.split(';')[0].strip()
        self.label = t.endswith(':')
        self.direc = t.startswith('.')
        self.w = set(); self.r = set(); self.kind = 'other'; self.C = set(); self.AB = set(); self.data = set()
        self.states = 0 if (self.label or self.direc or not t) else 1
        if self.states == 0: self.mn = ''; return
        p = t.split(None, 1)
        mn = self.mn = p[0]
        rest = p[1] if len(p) > 1 else ''
        ops = []; cur = ''; d = 0
        for ch in rest:
            if ch in '[(': d += 1
            if ch in '])': d -= 1
            if ch == ',' and d == 0: ops.append(cur.strip()); cur = ''
            else: cur += ch
        if cur.strip(): ops.append(cur.strip())
        mods = ''
        if ops:
            q = ops[-1].split(None, 1)
            ops[-1] = q[0]
            mods = q[1] if len(q) > 1 else ''
        R = [regs_of(o) for o in ops]
        U = lambda xs: set().union(*xs) if xs else set()
        self.dpp = ('_dpp' in mn) or ('row_' in mods) or ('quad_perm' in mods)
        if mn == 's_nop': self.states = int(ops[0], 0) + 1; return
        if mn.startswith('v_mfma'):
            self.kind = 'mfma'; self.w = R[0]; self.AB = R[1] | R[2]; self.C = R[3]; self.r = self.AB | self.C
            self.passes = 8 if '32x32' in mn else 4
        elif mn.startswith('v_'):
            self.kind = 'valu'
            base = mn.replace('_e32', '').replace('_e64', '').replace('_dpp', '').replace('_sdwa', '')
            self.trans = base in TRANS
            if 'permlane' in mn and 'swap' in mn:
                self.w = R[0] | R[1]; self.r = R[0] | R[1]
            elif base.startswith(('v_add_co', 'v_sub_co', 'v_addc_co', 'v_subb_co', 'v_subrev_co', 'v_mad_u64', 'v_div_scale')):
                self.w = R[0] | R[1]; self.r = U(R[2:])
            else:
                self.w = R[0]; self.r = U(R[1:])
                if base.startswith(('v_fmac', 'v_dot2c', 'v_writelane', 'v_pk_fmac')) or self.dpp: self.r |= R[0]
                if base.startswith('v_cmpx'): self.w |= regs_of('exec')
                if base.startswith('v_cndmask') and len(ops) == 3: self.r |= regs_of('vcc')
        elif mn.startswith('ds_'):
            self.kind = 'ds'
            if mn.startswith(('ds_read', 'ds_bpermute', 'ds_permute', 'ds_swizzle')): self.w = R[0]; self.r = U(R[1:])
            else: self.r = U(R)
        elif mn.startswith(('buffer_', 'global_')):
            self.kind = 'vmem'
            lds = ('lds' in mods.split()) or '_lds_' in mn
            if lds: self.r = U(R) | {('m0', 0)}; self.lds = True
            elif 'load' in mn: self.w = R[0]; self.r = U(R[1:])
            else:
                self.r = U(R)
                if 'atomic' in mn and 'sc0' in mods.split(): self.w = R[0]
                if mn.endswith(('x3', 'x4')):
                    self.data = R[0] if mn.startswith('buffer_') else R[1]
        elif mn.startswith('s_'):
            self.kind = 'salu'
            if mn.startswith(('s_cmp', 's_cbranch', 's_branch', 's_waitcnt', 's_barrier', 's_endpgm', 's_sleep', 's_setprio', 's_bitcmp')):
                self.r = U(R)
            else:
                self.w = R[0] if R else set(); self.r = U(R[1:])
                if 'saveexec' in mn: self.w |= regs_of('exec')

def isv(x): return x[0] in 'va' and x[0] != 'vcc'
def need(p, c):
    n = 0
    vw = {x for x in p.w if x[0] in ('v', 'a')}
    sw = {x for x in p.w if x[0] in ('s', 'vcc', 'exec')}
    if p.kind == 'valu':
        if c.kind == 'mfma' and vw & c.r: n = max(n, 2)
        if c.kind == 'valu':
            if vw & c.r:
                if 'permlane' in c.mn or c.dpp: n = max(n, 2)
                if c.mn.startswith(('v_readlane', 'v_readfirstlane')): n = max(n, 1)
                if p.trans: n = max(n, 1)
            if sw & c.r:
                n = max(n, 4 if c.mn.startswith(('v_readlane', 'v_writelane', 'v_div_fmas')) else 2)
        if c.kind in ('vmem', 'ds') and p.trans and vw & c.r: n = max(n, 1)
        if c.kind == 'vmem' and sw & c.r: n = max(n, 5)
        if c.kind == 'salu' and sw & c.r: n = max(n, 1)
        if ('exec', 0) in p.w and (c.kind in ('valu', 'mfma')): n = max(n, 5)
    if p.kind == 'mfma':
        big = {4: 8, 8: 12}[p.passes]; mid = {4: 6, 8: 10}[p.passes]; war = {4: 3, 8: 7}[p.passes]
        if c.kind == 'mfma':
            if p.w & c.AB: n = max(n, big)
            if p.w & c.C and not (p.w == c.C and p.passes == c.passes): n = max(n, mid)
            if p.w & c.w and not (p.w == c.C): n = max(n, mid)
        elif c.kind in ('valu', 'vmem', 'ds'):
            if p.w & (c.r | c.w): n = max(n, big)
            if c.kind == 'valu' and p.C & c.w: n = max(n, war)
    if p.kind == 'salu' and ('m0', 0) in p.w and ('m0', 0) in c.r and c.kind in ('vmem', 'valu', 'ds'): n = max(n, 1)
    if p.kind == 'vmem' and p.data and p.data & c.w: n = max(n, 2)
    return n

def fix_hazards(lines, verbose=False):
    out = []
    ins = []
    added = 0
    for s in lines:
        c = Ins(s)
        if c.states:
            dist = 0; req = 0
            for p in reversed(ins):
                if dist >= 12: break
                if p.states:
                    req = max(req, need(p, c) - dist)
                    dist += p.states
            if req > 0:
                nop = f's_nop {req-1}'
                out.append(nop); ins.append(Ins(nop)); added += req
        out.append(s); ins.append(c)
    lab = {i.s.split(';')[0].strip()[:-1]: k for k, i in enumerate(ins) if i.label}
    for k, b in enumerate(ins):
        if b.mn.startswith(('s_cbranch', 's_branch')):
            tgt = b.s.split(';')[0].split()[1]
            if tgt not in lab: continue
            j = lab[tgt]; d0 = 0; cons = []
            while j < len(ins) and d0 < 12:
                if ins[j].states: cons.append((ins[j], d0)); d0 += ins[j].states
                if ins[j].mn in ('s_branch', 's_endpgm'): break
                j += 1
            dist = 1
            for p in reversed(ins[:k]):
                if dist >= 12: break
                if p.states:
                    for c, dc in cons:
                        if need(p, c) > dist + dc:
                            raise RuntimeError(f'hazard across branch {b.s}: {p.s} -> {c.s}')
                    dist += p.states
    if verbose: print('hazard nops added:', added)
    return out

def interleave(mfmas, fillers):
    out = []
    d = {}
    for p, s in fillers: d.setdefault(p, []).append(s)
    out += d.get(-1, [])
    for i, m in enumerate(mfmas):
        out.append(m); out += d.get(i, [])
    for p in d: assert -1 <= p < len(mfmas), (p, len(mfmas))
    return out

def kernel_text(name, body, vgpr=512, accum=256, sgpr=102):
    return f'''.text
.globl {name}
.p2align 8
.type {name},@function
{name}:
{body}
s_endpgm
.section .rodata,"a"
.p2align 6
.amdhsa_kernel {name}
  .amdhsa_next_free_vgpr {vgpr}
  .amdhsa_next_free_sgpr {sgpr}
  .amdhsa_accum_offset {accum}
  .amdhsa_group_segment_fixed_size 0
  .amdhsa_kernarg_size 88
  .amdhsa_user_sgpr_count 2
  .amdhsa_user_sgpr_kernarg_segment_ptr 1
  .amdhsa_system_sgpr_workgroup_id_x 1
  .amdhsa_float_denorm_mode_32 3
.end_amdhsa_kernel
'''
```

```python
import sys, math, struct
from asmlib import *

NAME = 'parallel_sum__sliding_local_dilated__mixer_gmlp__prompt'
KX, KWQKV, KWO, KWIN, KWSP, KBSP, KWOUT, KOUT, KDBG, KWS = 0, 8, 16, 32, 40, 48, 56, 64, 72, 80
XN_OFF, XN_SZ = 0, 4 << 20
Z2_OFF, Z2_SZ = 4 << 20, 7 << 20
OH_OFF, OH_SZ = 12 << 20, 11 << 20
ST_OFF, ST_SZ = 24 << 20, 8 * 14 * 256 * 8
PROF_OFF = 32 << 20
OOB = 0x80000000

def f32(x): return '0x%08x' % struct.unpack('<I', struct.pack('<f', x))[0]
LOG2E = 1.4426950408889634
GC0 = -2.0 * LOG2E * math.sqrt(2.0 / math.pi)
GC1 = GC0 * 0.044715

class Cfg:
    prof = False

def srd(a, s, base, off, size):
    if off:
        a(f's_add_u32 s{s}, s{base}, {off}', f's_addc_u32 s{s+1}, s{base+1}, 0')
    else:
        a(f's_mov_b32 s{s}, s{base}', f's_mov_b32 s{s+1}, s{base+1}')
    a(f's_mov_b32 s{s+2}, {size}', f's_mov_b32 s{s+3}, 0x20000')

def stamp(a, i):
    if not Cfg.prof: return
    a('s_memtime s[100:101]', 's_waitcnt lgkmcnt(0)', f's_mov_b32 s{88+i}, s100')
def stamp_begin(a):
    if not Cfg.prof: return
    a('s_memrealtime s[84:85]')
    for i in range(8): a(f's_mov_b32 s{88+i}, 0')
    stamp(a, 0)
def stamp_end(a, kidx):
    if not Cfg.prof: return
    a('s_waitcnt vmcnt(0)')
    stamp(a, 7)
    a('s_memrealtime s[86:87]', 's_load_dwordx2 s[96:97], s[0:1], %d' % KWS, 's_waitcnt lgkmcnt(0)')
    a(f's_add_u32 s96, s96, {PROF_OFF + kidx * 65536}', 's_addc_u32 s97, s97, 0', 's_mov_b32 s98, 65536', 's_mov_b32 s99, 0x20000')
    a('s_mov_b64 exec, -1')
    a('v_mov_b32 v1, 0')
    for i, s in enumerate([84, 86] + list(range(88, 96))):
        a(f'v_writelane_b32 v1, s{s}, {i}')
    a('s_getreg_b32 s84, hwreg(HW_REG_XCC_ID)', 'v_writelane_b32 v1, s84, 10')
    a('v_mbcnt_lo_u32_b32 v2, -1, 0', 'v_mbcnt_hi_u32_b32 v2, -1, v2')
    a('s_lshl_b32 s84, s2, 8', 's_lshl_b32 s85, s3, 6', 's_add_u32 s84, s84, s85')
    a('v_lshl_add_u32 v3, v2, 2, s84')
    a('v_cmp_gt_u32 vcc, 16, v2', 's_and_saveexec_b64 s[86:87], vcc')
    a('buffer_store_dword v1, v3, s[96:99], 0 offen', 's_waitcnt vmcnt(0)')

def head(a, nwg, endlabel):
    a(f's_cmp_ge_u32 s2, {nwg}', f's_cbranch_scc1 {endlabel}')
    stamp_begin(a)
    a('v_lshrrev_b32 v1, 6, v0', 'v_and_b32 v0, 63, v0', 'v_readfirstlane_b32 s3, v1')

def bf16_round(a, v, t=None):
    a(f'v_cvt_pk_bf16_f32 v{v}, v{v}, v{v}', f'v_and_b32 v{v}, 0xffff0000, v{v}')

def gen_k0():
    a = Asm()
    head(a, 256, 'L0_end')
    a(f's_load_dwordx2 s[4:5], s[0:1], {KX}', f's_load_dwordx2 s[6:7], s[0:1], {KWS}', 's_waitcnt lgkmcnt(0)')
    srd(a, 8, 4, 0, 4 << 20); srd(a, 12, 6, XN_OFF, XN_SZ); srd(a, 16, 6, ST_OFF, ST_SZ)
    a('v_lshrrev_b32 v1, 3, v0', 'v_and_b32 v2, 7, v0')
    a('s_lshl_b32 s20, s2, 14', 's_lshl_b32 s21, s3, 9', 's_add_u32 s20, s20, s21')
    a('v_lshlrev_b32 v3, 11, v1', 'v_lshl_add_u32 v3, v2, 4, v3', 'v_add_u32 v3, s20, v3')
    a('s_lshl_b32 s22, s3, 12')
    for j in range(4):
        a(f's_add_u32 m0, s22, {j*(1024-128)}', f'buffer_load_dwordx4 v3, s[8:11], 0 offen offset:{j*128} lds')
    a('s_mul_i32 s23, s2, 896', 's_lshl_b32 s24, s3, 8', 's_add_u32 s23, s23, s24')
    a('v_lshl_add_u32 v4, v0, 2, s23', 'v_mov_b32 v5, -1')
    a('s_lshl_b32 s24, s3, 6', 'v_add_u32 v6, s24, v0', 'v_cmp_gt_u32 vcc, 224, v6', 's_and_saveexec_b64 s[26:27], vcc')
    a('buffer_store_dword v5, v4, s[16:19], 0 offen', 's_mov_b64 exec, s[26:27]')
    a('v_lshlrev_b32 v4, 7, v2', 'v_lshl_add_u32 v4, v1, 4, v4', 'v_add_u32 v4, s22, v4')
    a('s_waitcnt vmcnt(1)')
    for j in range(4): a(f'ds_read_b128 v[{8+4*j}:{11+4*j}], v4 offset:{j*1024}')
    a('s_waitcnt lgkmcnt(0)')
    X = 32
    for i in range(16):
        a(f'v_lshlrev_b32 v{X+2*i}, 16, v{8+i}', f'v_and_b32 v{X+2*i+1}, 0xffff0000, v{8+i}')
    a(f'v_pk_add_f32 v[24:25], v[{X}:{X+1}], v[{X+2}:{X+3}]', f'v_pk_mul_f32 v[26:27], v[{X}:{X+1}], v[{X}:{X+1}]')
    a(f'v_pk_fma_f32 v[26:27], v[{X+2}:{X+3}], v[{X+2}:{X+3}], v[26:27]')
    for i in range(2, 16):
        a(f'v_pk_add_f32 v[24:25], v[24:25], v[{X+2*i}:{X+2*i+1}]', f'v_pk_fma_f32 v[26:27], v[{X+2*i}:{X+2*i+1}], v[{X+2*i}:{X+2*i+1}], v[26:27]')
    a('v_add_f32 v24, v24, v25', 'v_add_f32 v25, v26, v27')
    a('v_add_f32_dpp v24, v24, v24 row_ror:8 row_mask:0xf bank_mask:0xf', 'v_add_f32_dpp v25, v25, v25 row_ror:8 row_mask:0xf bank_mask:0xf')
    for sw in ('v_permlane16_swap_b32', 'v_permlane32_swap_b32'):
        a('v_mov_b32 v26, v24', 'v_mov_b32 v27, v25', f'{sw} v24, v26', f'{sw} v25, v27', 'v_add_f32 v24, v24, v26', 'v_add_f32 v25, v25, v27')
    a('v_lshlrev_b32 v5, 3, v2', 's_lshl_b32 s24, s3, 6', 'v_add_u32 v6, s24, v5')
    a('ds_write_b64 v6, v[24:25] offset:16384', 's_waitcnt lgkmcnt(0)', 's_barrier')
    for j in range(4): a(f'ds_read_b64 v[{8+2*j}:{9+2*j}], v5 offset:{16384+64*j}')
    a('s_waitcnt lgkmcnt(0)')
    a('v_pk_add_f32 v[8:9], v[8:9], v[10:11]', 'v_pk_add_f32 v[12:13], v[12:13], v[14:15]', 'v_pk_add_f32 v[8:9], v[8:9], v[12:13]')
    a(f'v_mul_f32 v8, {f32(1/1024)}, v8', f'v_mul_f32 v9, {f32(1/1024)}, v9')
    a('v_fma_f32 v9, -v8, v8, v9', 'v_max_f32 v9, 0, v9')
    bf16_round(a, 8); bf16_round(a, 9)
    a(f'v_add_f32 v9, {f32(1e-5)}, v9'); bf16_round(a, 9)
    a('v_sqrt_f32 v9, v9'); bf16_round(a, 9)
    a('v_rcp_f32 v10, v9')
    for i in range(16):
        p = X + 2 * i
        a(f'v_pk_add_f32 v[{p}:{p+1}], v[{p}:{p+1}], v[8:9] op_sel_hi:[1,0] neg_lo:[0,1] neg_hi:[0,1]')
        a(f'v_cvt_pk_bf16_f32 v{12+i}, v{p}, v{p+1}')
    for i in range(16):
        p = X + 2 * i
        a(f'v_lshlrev_b32 v{p}, 16, v{12+i}', f'v_and_b32 v{p+1}, 0xffff0000, v{12+i}')
        a(f'v_pk_mul_f32 v[{p}:{p+1}], v[{p}:{p+1}], v[10:11] op_sel_hi:[1,0]')
        a(f'v_cvt_pk_bf16_f32 v{12+i}, v{p}, v{p+1}')
    a('s_lshr_b32 s20, s2, 1', 's_lshl_b32 s20, s20, 15', 's_and_b32 s21, s2, 1', 's_lshl_b32 s21, s21, 7', 's_add_u32 s20, s20, s21')
    a('s_lshl_b32 s21, s3, 13', 's_add_u32 s20, s20, s21')
    a('v_lshlrev_b32 v3, 8, v1', 'v_lshl_add_u32 v3, v2, 4, v3', 'v_add_u32 v3, s20, v3', 'v_add_u32 v4, 4096, v3')
    for j in range(4):
        a(f'buffer_store_dwordx4 v[{12+4*j}:{15+4*j}], v{3+(j>>1)}, s[12:15], 0 offen offset:{(j&1)*2048}')
    stamp_end(a, 0)
    a('L0_end:')
    return a

def tr_bases(a, vb, order, t0, t1):
    a(f'v_lshrrev_b32 v{t0}, 4, v0')
    a(f'v_lshlrev_b32 v{t0}, {10 if order == "nat" else 9}, v{t0}')
    a(f'v_bfe_u32 v{t1}, v0, 2, 2', f'v_lshl_add_u32 v{t0}, v{t1}, 7, v{t0}')
    a(f'v_and_b32 v{t1}, 3, v0', f'v_lshl_add_u32 v{t0}, v{t1}, 3, v{t0}')
    a(f'v_bfe_u32 v{t1}, v0, 3, 2')
    for nb in range(4):
        a(f'v_xor_b32 v{vb+nb}, {nb}, v{t1}', f'v_lshl_add_u32 v{vb+nb}, v{vb+nb}, 5, v{t0}')
def tr_off(order, sub, half): return sub * 4096 + half * (512 if order == 'nat' else 2048)

def gelu_tiles(a, tiles, tmp, vc0, sc1, extra=None):
    G = 2
    for i in range(0, len(tiles), G):
        grp = tiles[i:i+G]
        prs = [(t + 2*k, tmp + 4*j + 2*k) for j, t in enumerate(grp) for k in range(2)]
        for y, t in prs: a(f'v_pk_mul_f32 v[{t}:{t+1}], v[{y}:{y+1}], v[{y}:{y+1}]')
        for y, t in prs: a(f'v_pk_fma_f32 v[{t}:{t+1}], v[{t}:{t+1}], s[{sc1}:{sc1+1}], v[{vc0}:{vc0+1}]')
        for y, t in prs: a(f'v_pk_mul_f32 v[{t}:{t+1}], v[{t}:{t+1}], v[{y}:{y+1}]')
        for y, t in prs: a(f'v_exp_f32 v{t}, v{t}', f'v_exp_f32 v{t+1}, v{t+1}')
        for y, t in prs: a(f'v_pk_add_f32 v[{t}:{t+1}], v[{t}:{t+1}], 1.0 op_sel_hi:[1,0]')
        for y, t in prs: a(f'v_rcp_f32 v{t}, v{t}', f'v_rcp_f32 v{t+1}, v{t+1}')
        for y, t in prs: a(f'v_pk_mul_f32 v[{y}:{y+1}], v[{y}:{y+1}], v[{t}:{t+1}]')
        if extra:
            for j, t in enumerate(grp): extra(i + j, t)

def k1_gemm(a, pfx, NU, acc, swapped, rowstride):
    NB = NU * 4; MB = 4; R = 3; SLOT = NU * 8192; T = 16
    ND = 2 * NU
    VA = 4
    VD = 8
    VB0 = 16
    VB = 20
    fb = lambda st, nb: st * NB * 4 + nb * 4
    fa = lambda rg, mb: 96 + rg * 16 + mb * 4
    incB = 64 * rowstride
    def ldA(rg, mb, sub): return f'buffer_load_dwordx4 {AG(fa(rg, mb), 4)}, v{VA+mb}, s[8:11], s21 offen offset:{sub*1024}'
    def dma(j):
        return [f's_add_u32 m0, s23, {(j >> 1) * 8192 + (j & 1) * 4096}', f'buffer_load_dwordx4 v{VD+j}, s[12:15], s22 offen lds']
    def rds(st, sub):
        return [f'ds_read_b64_tr_b16 {AG(fb(st, nb) + 2*h, 2)}, v{VB + (nb & 3)} offset:{(nb >> 2) * 8192 + tr_off("nat", sub, h)}'
                for nb in range(NB) for h in range(2)]
    def mf(st, rg):
        o = []
        for nb in range(NB):
            for mb in range(MB):
                x, w = AG(fa(rg, mb), 4), AG(fb(st, nb), 4)
                p, q = (w, x) if swapped(nb) else (x, w)
                o.append(f'v_mfma_f32_16x16x32_bf16 {V(acc(mb, nb), 4)}, {p}, {q}, {V(acc(mb, nb), 4)}')
        return o
    H = ND // 2 if ND % 2 == 0 else None
    def adv_off():
        return ['s_add_u32 s21, s21, 2048', f's_cmp_ge_u32 s20, {T-2}', f's_cselect_b32 s21, s26, s21',
                f's_add_u32 s22, s22, {incB}', f's_cmp_ge_u32 s20, {T-3}', f's_cselect_b32 s22, s26, s22',
                's_add_u32 s20, s20, 1']
    def adv_slot():
        return ['s_add_u32 s23, s24, s25', f's_add_u32 s24, s24, {SLOT}', f's_cmp_eq_u32 s24, {R*SLOT}', 's_cselect_b32 s24, 0, s24']
    a(f's_mov_b32 s26, {OOB}', 's_lshl_b32 s25, s3, 10', 's_mov_b32 s21, 0', 's_mov_b32 s22, 0', 's_mov_b32 s23, s25')
    for j in range(ND): a(dma(j))
    a(f's_add_u32 s22, s22, {incB}', f's_add_u32 s23, s23, {SLOT}')
    for mb in range(MB): a(ldA(0, mb, 0))
    for j in range(H): a(dma(j))
    for mb in range(MB): a(ldA(1, mb, 1))
    for j in range(H, ND): a(dma(j))
    for mb in range(MB):
        for nb in range(NB):
            b = acc(mb, nb)
            a(f'v_pk_mov_b32 v[{b}:{b+1}], 0, 0', f'v_pk_mov_b32 v[{b+2}:{b+3}], 0, 0')
    for i in range(4): a(f'v_mov_b32 v{VB+i}, v{VB0+i}')
    a(f's_waitcnt vmcnt({8 + ND})', 's_barrier')
    stamp(a, 1)
    a(rds(0, 0))
    a(f's_add_u32 s22, s22, {incB}', f's_add_u32 s23, s23, {SLOT}', 's_mov_b32 s21, 2048', 's_mov_b32 s24, 0', 's_mov_b32 s20, 0')
    for mb in range(MB): a(ldA(2, mb, 0))
    for j in range(H): a(dma(j))
    M = NB * MB
    per = 4 + H
    a(f'{pfx}_loop:')
    for u in range(4):
        sub = u & 1
        a(f's_waitcnt vmcnt({H + 2*per}) lgkmcnt(0)')
        f = []
        r = rds((u + 1) & 1, sub ^ 1)
        for i, x in enumerate(r): f.append((i, x))
        gap = M // (per + 1)
        pos = [2 + gap * i for i in range(per)]
        for mb in range(MB): f.append((pos[mb], ldA((u + 3) & 3, mb, sub ^ 1)))
        for j in range(H):
            d = dma(j + (H if sub == 0 else 0))
            f.append((pos[4 + j] - 1, d[0])); f.append((pos[4 + j], d[1]))
        if sub == 0:
            last = pos[-1]
            assert last + 5 < M and len(r) <= last
            sl = adv_slot(); of = adv_off()
            q = sl + of
            k = last + 1
            for i, x in enumerate(q): f.append((min(k + i // 3, M - 2), x))
            for i in range(4): f.append((min(k + 2 + i // 2, M - 2), f'v_add_u32 v{VB+i}, s24, v{VB0+i}'))
        a(interleave(mf(u & 1, u), f))
        if sub == 0:
            a(f's_waitcnt vmcnt({2*per}) lgkmcnt(0)', 's_barrier')
    a(f's_cmp_lt_u32 s20, {T}', f's_cbranch_scc1 {pfx}_loop')
    a('s_waitcnt vmcnt(0) lgkmcnt(0)')
    stamp(a, 2)

def k1_dma_voffs(a, NU, rowstride, unit_stride, scol):
    a('v_lshrrev_b32 v1, 3, v0', 's_lshl_b32 s27, s3, 3', 'v_add_u32 v1, s27, v1')
    a(f's_mov_b32 s27, {rowstride}', 'v_mul_lo_u32 v1, v1, s27')
    a('v_bfe_u32 v2, v0, 4, 1', 's_and_b32 s27, s3, 1', 's_lshl_b32 s27, s27, 1', 'v_or_b32 v2, s27, v2', 'v_lshlrev_b32 v2, 1, v2')
    a('v_and_b32 v3, 7, v0', 'v_xor_b32 v2, v2, v3', 'v_lshl_add_u32 v1, v2, 4, v1', f'v_add_u32 v1, s{scol}, v1')
    for j in range(2 * NU):
        a(f'v_add_u32 v{8+j}, {(j >> 1) * unit_stride + (j & 1) * 32 * rowstride}, v1')

def k1_a_voffs(a, srb):
    a(f's_lshl_b32 s27, s3, 2', f's_add_u32 s27, s27, s{srb}', 's_lshl_b32 s27, s27, 15')
    a('v_lshl_add_u32 v4, v0, 4, s27')
    for mb in range(1, 4): a(f'v_add_u32 v{4+mb}, {mb*32768}, v4')

def gen_k1():
    a = Asm()
    head(a, 256, 'L1_end')
    a(f's_load_dwordx2 s[4:5], s[0:1], {KWQKV}', f's_load_dwordx2 s[6:7], s[0:1], {KWS}', f's_load_dwordx2 s[28:29], s[0:1], {KWIN}')
    a('s_and_b32 s30, s2, 7', 's_lshr_b32 s31, s2, 3')
    tr_bases(a, 16, 'nat', 1, 2)
    a('s_waitcnt lgkmcnt(0)')
    srd(a, 8, 6, XN_OFF, XN_SZ)
    a('s_cmp_ge_u32 s31, 18', 's_cbranch_scc1 L1_z2')
    srd(a, 12, 4, 0, 1024 * 6144); srd(a, 16, 6, OH_OFF, OH_SZ)
    a('s_cmp_ge_u32 s31, 9', 's_cselect_b32 s32, 1, 0', 's_cselect_b32 s33, 9, 0', 's_sub_u32 s33, s31, s33')
    a('s_lshl_b32 s34, s30, 1', 's_add_u32 s32, s32, s34')
    a('s_lshl_b32 s34, s32, 7', 's_mul_i32 s35, s33, 14')
    k1_dma_voffs(a, 3, 6144, 2048, 34); k1_a_voffs(a, 35)
    acc = lambda mb, nb: 64 + (mb * 12 + nb) * 4
    k1_gemm(a, 'L1q', 3, acc, lambda nb: nb < 8, 6144)
    attention(a, acc)
    a('s_branch L1_fin')
    a('L1_z2:')
    srd(a, 12, 28, 0, 1024 * 7168); srd(a, 16, 6, Z2_OFF, Z2_SZ); srd(a, 40, 6, ST_OFF, ST_SZ)
    a('s_mul_i32 s32, s30, 14', 's_add_u32 s32, s32, s31', 's_sub_u32 s32, s32, 18')
    a('s_and_b32 s33, s32, 7', 's_lshr_b32 s32, s32, 3')
    a('s_lshl_b32 s34, s32, 8', 's_add_u32 s34, s34, 3584', 's_lshl_b32 s35, s33, 4')
    k1_dma_voffs(a, 2, 7168, 128, 34); k1_a_voffs(a, 35)
    acc = lambda mb, nb: 128 + (mb * 8 + nb) * 4
    k1_gemm(a, 'L1z', 2, acc, lambda nb: False, 7168)
    z2_epilogue(a, acc)
    a('L1_fin:')
    stamp_end(a, 1)
    a('L1_end:')
    return a

def z2_epilogue(a, acc):
    SUM, SQ, TMP, C0 = 32, 48, 64, 72
    a(f's_mov_b32 s36, {f32(GC1)}', f's_mov_b32 s37, {f32(GC1)}', f'v_mov_b32 v{C0}, {f32(GC0)}', f'v_mov_b32 v{C0+1}, {f32(GC0)}')
    tiles = [acc(mb, nb) for nb in range(8) for mb in range(4)]
    def ex(i, t):
        mb = i & 3; s = SUM + 4 * mb; q = SQ + 4 * mb
        for k in (0, 2):
            if i < 4:
                a(f'v_pk_mov_b32 v[{s+k}:{s+k+1}], v[{t+k}:{t+k+1}], v[{t+k}:{t+k+1}] op_sel:[0,1]')
                a(f'v_pk_mul_f32 v[{q+k}:{q+k+1}], v[{t+k}:{t+k+1}], v[{t+k}:{t+k+1}]')
            else:
                a(f'v_pk_add_f32 v[{s+k}:{s+k+1}], v[{s+k}:{s+k+1}], v[{t+k}:{t+k+1}]')
                a(f'v_pk_fma_f32 v[{q+k}:{q+k+1}], v[{t+k}:{t+k+1}], v[{t+k}:{t+k+1}], v[{q+k}:{q+k+1}]')
    gelu_tiles(a, tiles, TMP, C0, 36, ex)
    stamp(a, 3)
    for B in (SUM, SQ):
        for i in range(8): a(f'v_add_f32_dpp v{B+i}, v{B+i}, v{B+i} row_ror:8 row_mask:0xf bank_mask:0x3')
    for B in (SUM, SQ):
        for i in range(8): a(f'v_add_f32_dpp v{B+i}, v{B+i+8}, v{B+i+8} row_ror:8 row_mask:0xf bank_mask:0xc')
    for B in (SUM, SQ):
        for i in range(4): a(f'v_add_f32_dpp v{B+i}, v{B+i}, v{B+i} row_shl:4 row_mask:0xf bank_mask:0x5')
    for B in (SUM, SQ):
        for i in range(4): a(f'v_add_f32_dpp v{B+i}, v{B+i+4}, v{B+i+4} row_shr:4 row_mask:0xf bank_mask:0xa')
    for qp in ('[1,0,3,2]', '[2,3,0,1]'):
        for B in (SUM, SQ):
            for i in range(4): a(f'v_add_f32_dpp v{B+i}, v{B+i}, v{B+i} quad_perm:{qp} row_mask:0xf bank_mask:0xf')
    a('s_mov_b32 s44, 0xaaaaaaaa', 's_mov_b32 s45, 0xaaaaaaaa', 's_mov_b32 s46, 0xcccccccc', 's_mov_b32 s47, 0xcccccccc')
    for B in (SUM, SQ):
        a(f'v_cndmask_b32 v{B}, v{B}, v{B+1}, s[44:45]', f'v_cndmask_b32 v{B+2}, v{B+2}, v{B+3}, s[44:45]')
    a(f'v_cndmask_b32 v24, v{SUM}, v{SUM+2}, s[46:47]', f'v_cndmask_b32 v25, v{SQ}, v{SQ+2}, s[46:47]')
    a('v_cmp_eq_u32 vcc, -1, v25', 'v_mov_b32 v26, 0x7fc00000', 'v_cndmask_b32 v25, v25, v26, vcc')
    a('v_bfe_u32 v1, v0, 2, 2', 'v_lshlrev_b32 v1, 4, v1', 'v_lshrrev_b32 v2, 4, v0', 'v_lshl_add_u32 v1, v2, 2, v1')
    a('v_and_b32 v2, 3, v0', 'v_add_u32 v1, v1, v2', 's_lshl_b32 s27, s3, 6', 'v_add_u32 v1, s27, v1')
    a('s_mul_i32 s27, s33, %d' % (14 * 2048), 'v_lshl_add_u32 v1, v1, 3, s27')
    a('s_lshl_b32 s27, s32, 11')
    a('buffer_store_dwordx2 v[24:25], v1, s[40:43], s27 offen sc0 sc1')
    for j in range(1, 7): a(f'v_add_u32 v{1+j}, {4096*j}, v1')
    P = 32
    a('s_mov_b32 s48, 0')
    a('L1z_poll:')
    for n in range(14):
        a(f'buffer_load_dwordx2 v[{P+2*n}:{P+2*n+1}], v{1 + (n >> 1)}, s[40:43], 0 offen offset:{(n & 1)*2048} sc0 sc1')
    a('s_waitcnt vmcnt(0)')
    a(f'v_max3_u32 v26, v{P+1}, v{P+3}, v{P+5}')
    for n in range(3, 13, 2): a(f'v_max3_u32 v26, v26, v{P+2*n+1}, v{P+2*n+3}')
    a(f'v_max_u32 v26, v26, v{P+27}')
    a('v_cmp_eq_u32 vcc, -1, v26', 's_add_u32 s48, s48, 1', 's_cmp_ge_u32 s48, 0x40000', 's_cbranch_scc1 L1z_go')
    a('s_cbranch_vccnz L1z_poll')
    a('L1z_go:')
    stamp(a, 4)
    for n in range(1, 14): a(f'v_pk_add_f32 v[{P}:{P+1}], v[{P}:{P+1}], v[{P+2*n}:{P+2*n+1}]')
    a(f'v_mul_f32 v24, {f32(1/1792)}, v{P}', f'v_mul_f32 v25, {f32(1/1792)}, v{P+1}')
    a('v_fma_f32 v25, -v24, v24, v25', 'v_max_f32 v25, 0, v25')
    bf16_round(a, 24); bf16_round(a, 25)
    a(f'v_add_f32 v25, {f32(1e-5)}, v25'); bf16_round(a, 25)
    a('v_sqrt_f32 v25, v25'); bf16_round(a, 25)
    a('v_rcp_f32 v25, v25', 'v_mul_f32 v24, v24, v25')
    RS, MS = 32, 48
    for i in range(16):
        a(f'v_mov_b32_dpp v{RS+i}, v25 row_newbcast:{i} row_mask:0xf bank_mask:0xf', f'v_mov_b32_dpp v{MS+i}, v24 row_newbcast:{i} row_mask:0xf bank_mask:0xf')
    a('v_lshrrev_b32 v1, 4, v0', 'v_and_b32 v2, 1, v1', 'v_lshrrev_b32 v1, 1, v1', 'v_lshl_add_u32 v1, v2, 1, v1', 'v_lshlrev_b32 v1, 8, v1')
    a('v_and_b32 v2, 15, v0', 'v_lshl_add_u32 v1, v2, 4, v1')
    a('s_lshl_b32 s27, s33, 13', 's_lshl_b32 s38, s3, 11', 's_add_u32 s27, s27, s38', 's_lshl_b32 s38, s32, 19', 's_add_u32 s27, s27, s38')
    O = 64
    for nb in range(8):
        for mp in range(2):
            o = O + ((nb * 2 + mp) & 3) * 4
            for b in range(2):
                mb = mp * 2 + b; t = acc(mb, nb)
                for k in (0, 2):
                    a(f'v_pk_fma_f32 v[{t+k}:{t+k+1}], v[{t+k}:{t+k+1}], v[{RS+4*mb+k}:{RS+4*mb+k+1}], v[{MS+4*mb+k}:{MS+4*mb+k+1}] neg_lo:[0,0,1] neg_hi:[0,0,1]')
            for b in range(2):
                t = acc(mp * 2 + b, nb)
                a(f'v_cvt_pk_bf16_f32 v{o+2*b}, v{t}, v{t+1}', f'v_cvt_pk_bf16_f32 v{o+2*b+1}, v{t+2}, v{t+3}')
            a(f'v_permlane16_swap_b32 v{o}, v{o+2}', f'v_permlane16_swap_b32 v{o+1}, v{o+3}')
            a(f'buffer_store_dwordx4 v[{o}:{o+3}], v1, s[16:19], s27 offen offset:{mp*1024}')
        if nb < 7: a('s_add_u32 s27, s27, 65536')

def attention(a, acc):
    Vp = lambda h, db, b: 24 + (h * 2 + db) * 10 + (b + 1) * 2
    Qp = lambda h, mb: acc(mb, 2 * h)
    Kp = lambda h, mb: acc(mb, 4 + 2 * h) if mb >= 0 else acc(0, 8 + h)
    for mb in range(4):
        for h in range(2):
            for db in range(2):
                t = acc(mb, 8 + 2 * h + db); d = Vp(h, db, mb)
                a(f'v_cvt_pk_bf16_f32 v{d}, v{t}, v{t+1}', f'v_cvt_pk_bf16_f32 v{d+1}, v{t+2}, v{t+3}')
    for mb in (3, 2, 1, 0):
        for base in (4, 6, 0, 2):
            t = acc(mb, base)
            for k in range(4): a(f'v_cvt_pk_bf16_f32 v{t+k}, v{t+2*k}, v{t+2*k+1}')
        if mb == 3:
            a('s_barrier')
            a('s_lshl_b32 s27, s3, 12', 'v_lshl_add_u32 v1, v0, 4, s27', 'v_lshl_add_u32 v2, v0, 3, s27')
            for h in range(2):
                a(f'ds_write_b128 v1, v[{Kp(h,3)}:{Kp(h,3)+3}] offset:{4096 + h*1024}')
                for db in range(2):
                    a(f'ds_write_b64 v2, v[{Vp(h,db,3)}:{Vp(h,db,3)+1}] offset:{4096 + 2048 + (h*2+db)*512}')
    a('s_waitcnt lgkmcnt(0)', 's_barrier')
    NEG = acc(0, 10)
    a('s_cmp_eq_u32 s3, 0', 's_cbranch_scc1 L1a_w0')
    for h in range(2):
        a(f'ds_read_b128 v[{Kp(h,-1)}:{Kp(h,-1)+3}], v1 offset:{h*1024}')
        for db in range(2):
            a(f'ds_read_b64 v[{Vp(h,db,-1)}:{Vp(h,db,-1)+1}], v2 offset:{2048 + (h*2+db)*512}')
    for k in range(4): a(f'v_mov_b32 v{NEG+k}, 0')
    a('s_branch L1a_go')
    a('L1a_w0:')
    for h in range(2):
        for k in range(4): a(f'v_mov_b32 v{Kp(h,-1)+k}, 0')
        for db in range(2): a(f'v_mov_b32 v{Vp(h,db,-1)}, 0', f'v_mov_b32 v{Vp(h,db,-1)+1}, 0')
    for k in range(4): a(f'v_mov_b32 v{NEG+k}, {f32(-1e30)}')
    a('L1a_go:')
    a('s_mov_b32 s44, 0xaaaaaaaa', 's_mov_b32 s45, 0xaaaaaaaa')
    a('v_lshrrev_b32 v3, 4, v0', 'v_and_b32 v4, 1, v0', 'v_lshl_add_u32 v3, v3, 2, v4', 'v_and_b32 v5, 15, v0')
    a('v_cmp_le_u32 s[46:47], v3, v5', 'v_add_u32 v3, 2, v3', 'v_cmp_le_u32 s[48:49], v3, v5')
    SEL = 8
    a('v_mov_b32 v12, 0x0c0c0100', 'v_mov_b32 v13, 0x01000c0c', 'v_cndmask_b32 v12, v12, v13, s[44:45]')
    a('v_mov_b32 v13, 0x0c0c0302', 'v_mov_b32 v14, 0x03020c0c', 'v_cndmask_b32 v13, v13, v14, s[44:45]')
    a('v_mov_b32 v14, 0x0c0c0c0c')
    a(f'v_cndmask_b32 v{SEL}, v12, v14, s[46:47]', f'v_cndmask_b32 v{SEL+1}, v13, v14, s[48:49]')
    a(f'v_cndmask_b32 v{SEL+2}, v14, v12, s[46:47]', f'v_cndmask_b32 v{SEL+3}, v14, v13, s[48:49]')
    a('s_waitcnt lgkmcnt(0)')
    probs = [(h, mb) for mb in range(4) for h in range(2)]
    S0 = lambda h, mb: acc(mb, 2 * h + 1)
    S1 = lambda h, mb: acc(mb, 4 + 2 * h + 1)
    for h, mb in probs:
        c = V(NEG, 4) if mb == 0 else '0'
        a(f'v_mfma_f32_16x16x32_bf16 {V(S0(h,mb),4)}, {V(Kp(h,mb-1),4)}, {V(Qp(h,mb),4)}, {c}')
        a(f'v_mfma_f32_16x16x32_bf16 {V(S1(h,mb),4)}, {V(Kp(h,mb),4)}, {V(Qp(h,mb),4)}, 0')
    def each(fn):
        for h, mb in probs: a(fn(S0(h, mb), S1(h, mb)))
    each(lambda p, q: [f'v_cndmask_b32 v{p}, v{p}, v{p+1}, s[44:45]', f'v_cndmask_b32 v{p+2}, v{p+2}, v{p+3}, s[44:45]',
                       f'v_cndmask_b32 v{q}, v{q}, v{q+1}, s[44:45]', f'v_cndmask_b32 v{q+2}, v{q+2}, v{q+3}, s[44:45]'])
    each(lambda p, q: [f'v_cndmask_b32 v{p}, v{p}, v{q}, s[46:47]', f'v_cndmask_b32 v{p+1}, v{p+2}, v{q+2}, s[48:49]'])
    a(f's_mov_b32 s36, {f32(32 ** -0.5)}', f's_mov_b32 s37, {f32(32 ** -0.5)}', f's_mov_b32 s38, {f32(LOG2E)}', f's_mov_b32 s39, {f32(LOG2E)}')
    each(lambda p, q: [f'v_cvt_pk_bf16_f32 v{q}, v{p}, v{p+1}'])
    each(lambda p, q: [f'v_lshlrev_b32 v{p}, 16, v{q}', f'v_and_b32 v{p+1}, 0xffff0000, v{q}'])
    each(lambda p, q: [f'v_pk_mul_f32 v[{p}:{p+1}], v[{p}:{p+1}], s[36:37]'])
    each(lambda p, q: [f'v_cvt_pk_bf16_f32 v{q}, v{p}, v{p+1}'])
    each(lambda p, q: [f'v_lshlrev_b32 v{p}, 16, v{q}', f'v_and_b32 v{p+1}, 0xffff0000, v{q}'])
    def allred(op):
        each(lambda p, q: [f'{op} v{p+2}, v{p}, v{p+1}', f'{op} v{p+3}, v{p}, v{p+1}'])
        each(lambda p, q: [f'v_permlane16_swap_b32 v{p+2}, v{p+3}'])
        each(lambda p, q: [f'{op} v{q}, v{p+2}, v{p+3}', f'{op} v{q+1}, v{p+2}, v{p+3}'])
        each(lambda p, q: [f'v_permlane32_swap_b32 v{q}, v{q+1}'])
        each(lambda p, q: [f'{op} v{p+2}, v{q}, v{q+1}'])
    allred('v_max_f32')
    each(lambda p, q: [f'v_pk_add_f32 v[{p}:{p+1}], v[{p}:{p+1}], v[{p+2}:{p+3}] op_sel_hi:[1,0] neg_lo:[0,1] neg_hi:[0,1]'])
    each(lambda p, q: [f'v_pk_mul_f32 v[{p}:{p+1}], v[{p}:{p+1}], s[38:39]'])
    each(lambda p, q: [f'v_exp_f32 v{p}, v{p}', f'v_exp_f32 v{p+1}, v{p+1}'])
    allred('v_add_f32')
    each(lambda p, q: [f'v_rcp_f32 v{p+2}, v{p+2}'])
    each(lambda p, q: [f'v_pk_mul_f32 v[{p}:{p+1}], v[{p}:{p+1}], v[{p+2}:{p+3}] op_sel_hi:[1,0]'])
    each(lambda p, q: [f'v_cvt_pk_bf16_f32 v{p}, v{p}, v{p+1}'])
    each(lambda p, q: [f'v_perm_b32 v{q+k}, v{p}, v{p}, v{SEL+k}' for k in range(4)])
    for h, mb in probs:
        for db in range(2):
            a(f'v_mfma_f32_16x16x32_bf16 {V(acc(mb, 2*h+db),4)}, {V(Vp(h,db,mb-1),4)}, {V(S1(h,mb),4)}, 0')
    a('s_lshl_b32 s27, s3, 2', 's_add_u32 s27, s27, s35', f's_mul_i32 s27, s27, {88*1024}', 's_lshl_b32 s36, s32, 11', 's_add_u32 s27, s27, s36')
    a('v_lshlrev_b32 v1, 4, v0')
    a('s_cmp_eq_u32 s3, 0', 's_cselect_b32 s36, s33, 0', 's_cmp_lg_u32 s36, 0', f's_cselect_b32 s36, s26, 0')
    for mb in range(4):
        so = 37
        if mb < 2: a(f's_or_b32 s37, s27, s36')
        else: a('s_mov_b32 s37, s27')
        for h in range(2):
            t = acc(mb, 2 * h)
            for k in range(4): a(f'v_cvt_pk_bf16_f32 v{t+k}, v{t+2*k}, v{t+2*k+1}')
            a(f'buffer_store_dwordx4 v[{t}:{t+3}], v1, s[16:19], s37 offen offset:{h*1024}')
        if mb < 3: a(f's_add_u32 s27, s27, {88*1024}')

class LG:
    def __init__(s, pfx, MB, NB, DA, DB, R, VD, VB0, VB, nbase, fa, fb):
        s.pfx, s.MB, s.NB, s.DA, s.DB, s.R = pfx, MB, NB, DA, DB, R
        s.D = DA + DB; s.SLOT = s.D * 4096; s.BOFF = DA * 4096
        s.VD, s.VB0, s.VB, s.nbase, s.fa, s.fb = VD, VB0, VB, nbase, fa, fb
        s.n = 0
    def dma(s, j):
        if j < s.DA:
            return [f's_add_u32 m0, s23, {j*1024}', f'buffer_load_dwordx4 v{s.VD+j}, s[8:11], s21 offen lds']
        return [f's_add_u32 m0, s30, {(j-s.DA)*1024}', f'buffer_load_dwordx4 v{s.VD+j}, s[12:15], s22 offen lds']
    def next_stage(s, switches):
        o = ['s_add_u32 s21, s21, s28', 's_add_u32 s22, s22, s29', 's_add_u32 s20, s20, 1']
        for st, code in switches:
            s.n += 1
            o += [f's_cmp_lg_u32 s20, {st}', f's_cbranch_scc1 {s.pfx}_sw{s.n}'] + code + [f'{s.pfx}_sw{s.n}:']
        return o
    def adv_slot(s):
        return ['s_add_u32 s23, s24, s25', 's_add_u32 s30, s24, s31', f's_add_u32 s24, s24, {s.SLOT}',
                f's_cmp_eq_u32 s24, {s.R*s.SLOT}', 's_cselect_b32 s24, 0, s24']
    def mf(s, st, acc):
        return [f'v_mfma_f32_16x16x32_bf16 {V(acc(mb, nb), 4)}, {AG(s.fb(st, nb), 4)}, {AG(s.fa(st, mb), 4)}, {V(acc(mb, nb), 4)}'
                for nb in range(s.NB) for mb in range(s.MB)]
    def prologue(s, a, rd_first, zero):
        a(f's_mov_b32 s26, {OOB}', f's_mul_i32 s25, s3, {s.DA*1024}', f's_mul_i32 s31, s3, {s.DB*1024}', f's_add_u32 s31, s31, {s.BOFF}')
        a('s_mov_b32 s20, 0', 's_mov_b32 s23, s25', 's_mov_b32 s30, s31')
        H = s.D // 2
        for st in range(s.R - 1):
            for j in range(s.D): a(s.dma(j))
            a(s.next_stage([]), f's_add_u32 s23, s23, {s.SLOT}', f's_add_u32 s30, s30, {s.SLOT}')
            if st == 0:
                a(zero)
                for i in range(s.nbase): a(f'v_mov_b32 v{s.VB+i}, v{s.VB0+i}')
        a(f's_waitcnt vmcnt({(s.R-2)*s.D})', 's_barrier')
        stamp(a, 1)
        a(rd_first)
        a('s_mov_b32 s24, 0')
        for j in range(H): a(s.dma(j))
    def step(s, a, acc, rd_cur, rd_next, switches, base_switch=None):
        M = s.MB * s.NB; H = s.D // 2
        def place(reads, dm):
            f = []
            nrd = len(reads); span = max(1, M - 2)
            for i, x in enumerate(reads): f.append((min(i * span // max(nrd, span), M - 2) if nrd > span else i, x))
            for i, j in enumerate(dm):
                p = 1 + (i * (M - 2)) // len(dm)
                d = s.dma(j); f.append((p - 1, d[0])); f.append((p, d[1]))
            return f
        a('s_waitcnt lgkmcnt(0)')
        f = place(rd_cur(1, 1), range(H, s.D))
        a(interleave(s.mf(0, acc)[:M-1], [(min(p, M - 2), x) for p, x in f]))
        a(s.adv_slot())
        if base_switch: a(base_switch)
        for i in range(s.nbase): a(f'v_add_u32 v{s.VB+i}, s24, v{s.VB0+i}')
        a(s.next_stage(switches))
        a(s.mf(0, acc)[M-1])
        a(f's_waitcnt vmcnt({(s.R-2)*s.D}) lgkmcnt(0)', 's_barrier')
        f = place(rd_next(0, 0), range(H))
        a(interleave(s.mf(1, acc), f))

def fl_voffs(a, vd, n, sbase, blkstride):
    a(f's_mul_i32 s27, s3, {(n // 2) * blkstride}', f's_add_u32 s27, s27, s{sbase}', f'v_lshl_add_u32 v{vd}, v0, 4, s27')
    for j in range(1, n): a(f'v_add_u32 v{vd+j}, {(j >> 1) * blkstride + (j & 1) * 1024}, v{vd}')

def gen_k2():
    a = Asm()
    head(a, 256, 'L2_end')
    a('s_and_b32 s32, s2, 7', 's_lshr_b32 s33, s2, 3')
    a('s_cmp_ge_u32 s33, 28', 's_cbranch_scc1 L2_end')
    a(f's_load_dwordx2 s[4:5], s[0:1], {KWIN}', f's_load_dwordx2 s[6:7], s[0:1], {KWS}', f's_load_dwordx4 s[36:39], s[0:1], {KWSP}')
    a('s_and_b32 s34, s32, 3', 's_lshl_b32 s34, s34, 2', 's_and_b32 s27, s33, 3', 's_add_u32 s34, s34, s27')
    a('s_lshr_b32 s35, s32, 2', 's_mul_i32 s35, s35, 7', 's_lshr_b32 s27, s33, 2', 's_add_u32 s35, s35, s27')
    a('s_lshr_b32 s40, s3, 1', 's_and_b32 s41, s3, 1')
    VD, VD2, VB0, VB, VB2 = 8, 16, 24, 30, 36
    g = LG('L2', 4, 4, 4, 4, 4, VD, VB0, VB, 5, lambda st, mb: st * 32 + mb * 4, lambda st, nb: st * 32 + 16 + nb * 4)
    a('s_lshl_b32 s42, s34, 18'); fl_voffs(a, VD, 4, 42, 32768)
    a('v_lshrrev_b32 v1, 3, v0', 's_lshl_b32 s27, s41, 5', 'v_add_u32 v1, s27, v1', 's_mov_b32 s27, 7168', 'v_mul_lo_u32 v1, v1, s27')
    a('s_lshl_b32 s27, s35, 8', 's_lshl_b32 s42, s40, 7', 's_add_u32 s27, s27, s42', 'v_add_u32 v1, s27, v1')
    a('v_bfe_u32 v2, v0, 4, 1', 'v_lshlrev_b32 v2, 1, v2', 'v_and_b32 v3, 7, v0', 'v_xor_b32 v2, v2, v3')
    for j in range(4):
        a(f'v_xor_b32 v3, {(j & 1) * 4}, v2', f'v_lshl_add_u32 v{VD+4+j}, v3, 4, v1', f'v_add_u32 v{VD+4+j}, {j*8*7168}, v{VD+4+j}')
    a('v_lshrrev_b32 v1, 3, v0', 's_lshl_b32 s27, s34, 7', 's_lshl_b32 s42, s3, 5', 's_add_u32 s27, s27, s42', 'v_add_u32 v1, s27, v1', 'v_lshlrev_b32 v1, 12, v1')
    a('v_lshrrev_b32 v2, 4, v0', 'v_and_b32 v3, 7, v0', 'v_xor_b32 v2, v2, v3')
    for j in range(4):
        a(f'v_xor_b32 v3, {(j & 1) * 4}, v2', f'v_lshl_add_u32 v{VD2+j}, v3, 4, v1', f'v_add_u32 v{VD2+j}, {j*8*4096}, v{VD2+j}')
    a('s_lshl_b32 s42, s35, 19'); fl_voffs(a, VD2 + 4, 4, 42, 65536)
    tr_bases(a, VB0, 'nat', 1, 2)
    a('s_lshl_b32 s27, s41, 13', 's_add_u32 s27, s27, 16384')
    for i in range(4): a(f'v_add_u32 v{VB0+i}, s27, v{VB0+i}')
    a(f'v_lshl_add_u32 v{VB2+2}, v0, 4, s27')
    a('s_lshl_b32 s27, s40, 13', f'v_lshl_add_u32 v{VB0+4}, v0, 4, s27')
    a('v_and_b32 v1, 15, v0', 'v_lshrrev_b32 v2, 1, v1', 'v_lshrrev_b32 v3, 4, v0', 'v_xor_b32 v2, v2, v3')
    a('v_lshl_add_u32 v1, v1, 7, s27', f'v_lshl_add_u32 v{VB2}, v2, 4, v1', 'v_xor_b32 v2, 4, v2', f'v_lshl_add_u32 v{VB2+1}, v2, 4, v1')
    a('s_waitcnt lgkmcnt(0)')
    srd(a, 8, 6, XN_OFF, XN_SZ); srd(a, 12, 4, 0, 1024 * 7168); srd(a, 16, 6, OH_OFF, OH_SZ); srd(a, 44, 38, 0, 4096)
    a('s_mov_b32 s21, 0', 's_mov_b32 s22, 0', 's_mov_b32 s28, 2048', f's_mov_b32 s29, {64*7168}')
    acc1 = lambda mb, nb: 64 + (mb * 4 + nb) * 4
    acc2 = lambda mb, nb: 128 + (mb * 4 + nb) * 4
    def rd1(st, sub):
        o = [f'ds_read_b128 {AG(g.fa(st, mb), 4)}, v{VB+4} offset:{mb*2048 + sub*1024}' for mb in range(4)]
        o += [f'ds_read_b64_tr_b16 {AG(g.fb(st, nb) + 2*h, 2)}, v{VB+nb} offset:{tr_off("nat", sub, h)}' for nb in range(4) for h in range(2)]
        return o
    def rd2(st, sub):
        o = [f'ds_read_b128 {AG(g.fa(st, mb), 4)}, v{VB+sub} offset:{mb*2048}' for mb in range(4)]
        o += [f'ds_read_b128 {AG(g.fb(st, nb), 4)}, v{VB+2} offset:{nb*2048 + sub*1024}' for nb in range(4)]
        return o
    zero = [f'v_pk_mov_b32 v[{b}:{b+1}], 0, 0' for b in range(64, 192, 2)]
    zero += ['s_lshl_b32 s27, s34, 8', 's_lshl_b32 s42, s40, 7', 's_add_u32 s27, s27, s42', 'v_and_b32 v1, 15, v0', 'v_lshl_add_u32 v47, v1, 1, s27']
    sw2 = [f'v_mov_b32 v{VD+j}, v{VD2+j}' for j in range(8)]
    sw2 += ['s_mov_b32 s8, s36', 's_mov_b32 s9, s37', f's_mov_b32 s10, {2048*4096}',
            f's_add_u32 s12, s6, {Z2_OFF}', 's_addc_u32 s13, s7, 0', f's_mov_b32 s14, {Z2_SZ}',
            's_mov_b32 s21, 0', 's_mov_b32 s22, 0', 's_mov_b32 s28, 128', 's_mov_b32 s29, 2048']
    swe = ['s_mov_b32 s21, s26', 's_mov_b32 s22, s26', 's_mov_b32 s28, 0', 's_mov_b32 s29, 0']
    g.prologue(a, rd1(0, 0), zero)
    R = g.R
    a('L2_loop1:')
    g.step(a, acc1, rd1, rd1, [(16, sw2)])
    a(f's_cmp_lt_u32 s20, {15 + R - 1}', 's_cbranch_scc1 L2_loop1')
    g.step(a, acc1, rd1, rd2, [], base_switch=[f'v_mov_b32 v{VB0+i}, v{VB2+i}' for i in range(3)])
    stamp(a, 2)
    a(f's_mov_b32 s48, {f32(GC1)}', f's_mov_b32 s49, {f32(GC1)}', f'v_mov_b32 v48, {f32(GC0)}', f'v_mov_b32 v49, {f32(GC0)}')
    gelu_tiles(a, [acc1(mb, nb) for nb in range(4) for mb in range(4)], 52, 48, 48)
    stamp(a, 3)
    a('L2_loop2:')
    g.step(a, acc2, rd2, rd2, [(48, swe)])
    a(f's_cmp_lt_u32 s20, {48 + R - 1}', 's_cbranch_scc1 L2_loop2')
    stamp(a, 4)
    for mb in range(4): a(f'buffer_load_ushort v{40+2*mb}, v47, s[44:47], 0 offen offset:{mb*32}') if mb < 3 else None
    a('buffer_load_ushort v46, v47, s[44:47], 0 offen offset:96')
    a('s_waitcnt vmcnt(0) lgkmcnt(0)')
    for mb in range(4): a(f'v_lshlrev_b32 v{40+2*mb}, 16, v{40+2*mb}')
    a('s_lshl_b32 s27, s34, 3', 's_lshl_b32 s42, s40, 2', 's_add_u32 s27, s27, s42', f's_mul_i32 s27, s27, {88*1024}')
    a('s_lshl_b32 s42, s35, 12', 's_add_u32 s27, s27, s42', 's_lshl_b32 s42, s41, 11', 's_add_u32 s27, s27, s42', 's_add_u32 s27, s27, 32768')
    a('v_lshlrev_b32 v1, 4, v0')
    for mb in range(4):
        for np_ in range(2):
            t = acc2(mb, 2 * np_); z = acc1(mb, 2 * np_)
            for k in range(0, 8, 2): a(f'v_pk_add_f32 v[{t+k}:{t+k+1}], v[{t+k}:{t+k+1}], v[{40+2*mb}:{41+2*mb}] op_sel_hi:[1,0]')
            for k in range(0, 8, 2): a(f'v_pk_mul_f32 v[{t+k}:{t+k+1}], v[{t+k}:{t+k+1}], v[{z+k}:{z+k+1}]')
            for k in range(4): a(f'v_cvt_pk_bf16_f32 v{z+k}, v{t+2*k}, v{t+2*k+1}')
            a(f'buffer_store_dwordx4 v[{z}:{z+3}], v1, s[16:19], s27 offen offset:{np_*1024}')
        if mb < 3: a(f's_add_u32 s27, s27, {88*1024}')
    stamp_end(a, 2)
    a('L2_end:')
    return a

def gen_k3():
    a = Asm()
    head(a, 256, 'L3_end')
    a('s_and_b32 s32, s2, 7', 's_lshr_b32 s33, s2, 3')
    a(f's_load_dwordx2 s[4:5], s[0:1], {KWO}', f's_load_dwordx2 s[6:7], s[0:1], {KWS}', f's_load_dwordx4 s[36:39], s[0:1], {KWOUT}', f's_load_dwordx2 s[48:49], s[0:1], {KX}')
    a('s_and_b32 s34, s32, 3', 's_lshl_b32 s34, s34, 2', 's_and_b32 s27, s33, 3', 's_add_u32 s34, s34, s27')
    a('s_lshr_b32 s35, s32, 2', 's_lshl_b32 s35, s35, 3', 's_lshr_b32 s27, s33, 2', 's_add_u32 s35, s35, s27')
    a('s_lshr_b32 s40, s3, 1', 's_and_b32 s41, s3, 1')
    VD, VB0, VB = 8, 24, 30
    g = LG('L3', 4, 2, 4, 2, 5, VD, VB0, VB, 3, lambda st, mb: st * 32 + mb * 4, lambda st, nb: st * 32 + 16 + nb * 4)
    a(f's_mul_i32 s42, s34, {8*88*1024}'); fl_voffs(a, VD, 4, 42, 88 * 1024)
    a('v_lshrrev_b32 v1, 3, v0', 's_lshl_b32 s27, s3, 4', 'v_add_u32 v1, s27, v1', 'v_lshlrev_b32 v1, 11, v1')
    a('s_lshl_b32 s27, s35, 7', 'v_add_u32 v1, s27, v1')
    a('v_lshrrev_b32 v2, 4, v0', 'v_lshlrev_b32 v2, 1, v2', 'v_and_b32 v3, 7, v0', 'v_xor_b32 v2, v2, v3')
    a(f'v_lshl_add_u32 v{VD+4}, v2, 4, v1', f'v_add_u32 v{VD+5}, {8*2048}, v{VD+4}')
    tr_bases(a, 16, 'pi', 1, 2)
    a('s_cmp_eq_u32 s41, 0', 's_cselect_b64 s[42:43], -1, 0')
    a(f'v_cndmask_b32 v{VB0}, v18, v16, s[42:43]', f'v_cndmask_b32 v{VB0+1}, v19, v17, s[42:43]')
    a(f'v_add_u32 v{VB0}, 16384, v{VB0}', f'v_add_u32 v{VB0+1}, 16384, v{VB0+1}')
    a('s_lshl_b32 s27, s40, 13', f'v_lshl_add_u32 v{VB0+2}, v0, 4, s27')
    a('s_waitcnt lgkmcnt(0)')
    srd(a, 8, 6, OH_OFF, OH_SZ); srd(a, 12, 4, 0, 1024 * 2048); srd(a, 16, 38, 0, 4 << 20); srd(a, 44, 48, 0, 4 << 20)
    a('s_mov_b32 s21, 0', 's_mov_b32 s22, 0', 's_mov_b32 s28, 2048', f's_mov_b32 s29, {64*2048}')
    acc = lambda mb, nb: 64 + (mb * 2 + nb) * 4
    def rd(st, sub):
        o = [f'ds_read_b128 {AG(g.fa(st, mb), 4)}, v{VB+2} offset:{mb*2048 + sub*1024}' for mb in range(4)]
        o += [f'ds_read_b64_tr_b16 {AG(g.fb(st, nb) + 2*h, 2)}, v{VB+nb} offset:{tr_off("pi", sub, h)}' for nb in range(2) for h in range(2)]
        return o
    zero = [f'v_pk_mov_b32 v[{b}:{b+1}], 0, 0' for b in range(64, 96, 2)]
    sw2 = ['s_mov_b32 s12, s36', 's_mov_b32 s13, s37', f's_mov_b32 s14, {1792*2048}', 's_mov_b32 s22, 0']
    swe = ['s_mov_b32 s21, s26', 's_mov_b32 s22, s26', 's_mov_b32 s28, 0', 's_mov_b32 s29, 0']
    g.prologue(a, rd(0, 0), zero)
    a('L3_loop:')
    g.step(a, acc, rd, rd, [(16, sw2), (44, swe)])
    a(f's_cmp_lt_u32 s20, {44 + g.R - 1}', 's_cbranch_scc1 L3_loop')
    stamp(a, 2)
    a('v_lshrrev_b32 v1, 3, v0', 'v_and_b32 v2, 7, v0')
    a('s_lshl_b32 s27, s34, 7', 's_lshl_b32 s42, s3, 5', 's_add_u32 s27, s27, s42', 'v_add_u32 v3, s27, v1', 'v_lshlrev_b32 v3, 11, v3')
    a('s_lshl_b32 s27, s35, 7', 'v_lshl_add_u32 v3, v2, 4, v3', 'v_add_u32 v4, s27, v3')
    for j in range(1, 4): a(f'v_add_u32 v{4+j}, {j*8*2048}, v4')
    for j in range(4): a(f'buffer_load_dwordx4 v[{32+4*j}:{35+4*j}], v{4+j}, s[44:47], 0 offen')
    a('s_waitcnt vmcnt(4) lgkmcnt(0)', 's_barrier')
    a('v_and_b32 v8, 15, v0', 's_lshl_b32 s27, s40, 6', 'v_add_u32 v8, s27, v8', 'v_mul_u32_u24 v8, 272, v8')
    a('v_lshrrev_b32 v9, 4, v0', 'v_lshl_add_u32 v8, v9, 4, v8', 's_lshl_b32 s27, s41, 7', 'v_add_u32 v8, s27, v8')
    for mb in range(4):
        for nb in range(2): a(f'ds_write_b128 v8, {V(acc(mb, nb), 4)} offset:{mb*16*272 + nb*64}')
    a('s_lshl_b32 s27, s3, 5', 'v_add_u32 v9, s27, v1', 'v_mul_u32_u24 v9, 272, v9', 'v_lshl_add_u32 v9, v2, 5, v9')
    a('s_waitcnt lgkmcnt(0)', 's_barrier')
    for j in range(4):
        for h in range(2): a(f'ds_read_b128 v[{64+8*j+4*h}:{67+8*j+4*h}], v9 offset:{j*8*272 + h*16}')
    a('s_waitcnt vmcnt(0)')
    for j in range(4):
        for k in range(4): a(f'v_lshlrev_b32 v{100+8*j+2*k}, 16, v{32+4*j+k}', f'v_and_b32 v{101+8*j+2*k}, 0xffff0000, v{32+4*j+k}')
    a('s_waitcnt lgkmcnt(0)')
    for j in range(4):
        for k in range(4): a(f'v_pk_add_f32 v[{64+8*j+2*k}:{65+8*j+2*k}], v[{64+8*j+2*k}:{65+8*j+2*k}], v[{100+8*j+2*k}:{101+8*j+2*k}]')
        for k in range(4): a(f'v_cvt_pk_bf16_f32 v{32+4*j+k}, v{64+8*j+2*k}, v{65+8*j+2*k}')
        a(f'buffer_store_dwordx4 v[{32+4*j}:{35+4*j}], v{4+j}, s[16:19], 0 offen')
    stamp_end(a, 3)
    a('L3_end:')
    return a

def build(prof=False):
    Cfg.prof = prof
    hdr = open(f'cdna_kernels/{NAME}.s.ref').read().split('; Override launch')[0]
    ks = [('k0_ln_kernel', gen_k0(), 20480, 128, 128), ('k1_qkvz_kernel', gen_k1(), 73728 + 16384, 512, 256),
          ('k2_gate_kernel', gen_k2(), 131072, 512, 256), (NAME + '_kernel', gen_k3(), 122880, 512, 256)]
    out = hdr
    for n, _, lds, _, _ in ks: out += f'; @launch kernel={n} grid=(256,1,1) block=(256,1,1) lds={lds}\n'
    out += '.amdgcn_target "amdgcn-amd-amdhsa--gfx950"\n'
    for n, a, lds, vg, ac in ks:
        out += kernel_text(n, '\n'.join(fix_hazards(a.L, verbose=True)), vgpr=vg, accum=ac)
    return out

if __name__ == '__main__':
    open(f'cdna_kernels/{NAME}.s', 'w').write(build(False))
    open('prof.s', 'w').write(build(True))
```
